```python
import torch

def _softmax(x, axis=-1):
    return torch.softmax(x, dim=axis)
def _gelu(x):
    return torch.nn.functional.gelu(x, approximate="tanh")
def _silu(x):
    return torch.nn.functional.silu(x)
def _sigmoid(x):
    return torch.sigmoid(x)
def _layernorm(x, axis=-1, eps=1e-5):
    m = x.mean(dim=axis, keepdim=True)
    v = x.var(dim=axis, keepdim=True, unbiased=False)
    return (x - m) / torch.sqrt(v + eps)
def _scatter_add(tgt, idx, src, axis=0):
    return tgt.clone().index_add_(axis, idx, src)
def _segment_sum(src, seg, n):
    out = torch.zeros((n,) + src.shape[1:], dtype=src.dtype)
    return out.index_add_(0, seg, src)
def _pad(x, pw):
    flat = tuple(v for pair in reversed(pw) for v in pair)
    return torch.nn.functional.pad(x, flat)

kernel_name = 'parallel_sum__softmax_full_mha__glu_gated_swiglu__prompt'

def setup_inputs():

    _w = (lambda a: (lambda t: t.to(torch.bfloat16) if t.is_floating_point() else t)(torch.as_tensor(a)))
    def _A_setup():
        B, S, D = 1, 2048, 448
        return {
            "x": _w((lambda *s: torch.randn(*s, dtype=torch.bfloat16) * 0.05)(B, S, D)),
            "wqkv": _w((lambda *s: torch.randn(*s, dtype=torch.bfloat16) * 0.05)(D, 3 * D)),
            "wo": _w((lambda *s: torch.randn(*s, dtype=torch.bfloat16) * 0.05)(D, D)),
        }
    _A_in = _A_setup()

    def _B_setup():
        B, S, D, F = 1, 2048, 448, 1792
        return {
            "x": _w((lambda *s: torch.randn(*s, dtype=torch.bfloat16) * 0.05)(B, S, D)),
            "w1": _w((lambda *s: torch.randn(*s, dtype=torch.bfloat16) * 0.4)(D, F) * (2.0 / D) ** 0.5),
            "w3": _w((lambda *s: torch.randn(*s, dtype=torch.bfloat16) * 0.4)(D, F) * (2.0 / D) ** 0.5),
            "w2": _w((lambda *s: torch.randn(*s, dtype=torch.bfloat16) * 0.4)(F, D) * (2.0 / F) ** 0.5),
        }
    _B_in = _B_setup()

    return {
        "A_x": _A_in["x"],
        "A_wqkv": _A_in["wqkv"],
        "A_wo": _A_in["wo"],
        "B_x": _B_in["x"],
        "B_w1": _B_in["w1"],
        "B_w3": _B_in["w3"],
        "B_w2": _B_in["w2"],
    }

def reference(A_x, A_wqkv, A_wo, B_x, B_w1, B_w3, B_w2):
    def _A_ref(x, wqkv, wo):
        B, S, D = x.shape
        H = 16; Dh = D // H
        qkv = (lambda x, *d: x.permute(*d))((x @ wqkv).reshape(B, S, 3, H, Dh), 2, 0, 3, 1, 4)
        q, k, v = qkv[0], qkv[1], qkv[2]
        scale = Dh ** -0.5
        scores = torch.einsum("bhqd,bhkd->bhqk", q, k) * scale
        p = _softmax(scores, axis=-1)
        o = torch.einsum("bhqk,bhkd->bhqd", p, v)
        return (lambda x, *d: x.permute(*d))(o, 0, 2, 1, 3).reshape(B, S, D) @ wo

    def _B_ref(x, w1, w3, w2):
        gate = torch.einsum("bsd,df->bsf", x, w1)
        up = torch.einsum("bsd,df->bsf", x, w3)
        h = _silu(gate) * up
        out = torch.einsum("bsf,fd->bsd", h, w2)
        return out

    x = A_x
    xn = _layernorm(x, axis=-1)
    return x + _A_ref(xn, A_wqkv, A_wo) + _B_ref(xn, B_w1, B_w3, B_w2)
```

```python
import re

class Asm:
    def __init__(self):
        self.lines = []
    def __call__(self, s=""):
        for ln in s.split("\n"):
            self.lines.append(ln)
    def label(self, name):
        self.lines.append(f"{name}:")
    def ext(self, items):
        for it in items:
            self(it)
    def text(self):
        out = []
        for ln in self.lines:
            t = ln.strip()
            if not t:
                continue
            if t.endswith(":") or t.startswith(".") or t.startswith(";"):
                out.append(t)
            else:
                out.append("    " + t)
        return "\n".join(out) + "\n"

def vr(i, n=1):
    return f"v{i}" if n == 1 else f"v[{i}:{i+n-1}]"
def ar(i, n=1):
    return f"a{i}" if n == 1 else f"a[{i}:{i+n-1}]"
def sr(i, n=1):
    return f"s{i}" if n == 1 else f"s[{i}:{i+n-1}]"

class VM:
    def __init__(self):
        self.q = []
    def issue(self, tag):
        self.q.append(tag)
    def wait_for(self, tag):
        idx = [i for i, t in enumerate(self.q) if t == tag]
        assert idx, f"tag {tag} never issued"
        n = len(self.q) - 1 - idx[-1]
        assert n <= 63, f"vmcnt {n} does not fit for {tag}"
        return n

_REG = re.compile(r"(?<![\w.])([vas])(?:\[(\d+):(\d+)\]|(\d+))(?![\w])")
def regs_of(tok):
    out = []
    for m in _REG.finditer(tok):
        f = m.group(1)
        if m.group(2) is not None:
            out += [(f, i) for i in range(int(m.group(2)), int(m.group(3)) + 1)]
        else:
            out.append((f, int(m.group(4))))
    if re.search(r"\bvcc\b", tok): out.append(("s", "vcc"))
    if re.search(r"\bm0\b", tok): out.append(("s", "m0"))
    if re.search(r"\bexec\b", tok): out.append(("s", "exec"))
    return out

TRANS = ("v_exp_f32", "v_log_f32", "v_rcp_f32", "v_rsq_f32", "v_sqrt_f32", "v_sin_f32", "v_cos_f32")

class Ins:
    def __init__(self, text):
        self.text = text
        t = text.split(";")[0].strip()
        parts = t.split(None, 1)
        self.op = parts[0]
        ops = [o.strip() for o in self._split(parts[1])] if len(parts) > 1 else []
        self.ops = ops
        op = self.op
        self.kind = "other"
        self.w = set(); self.r = set()
        self.states = 1
        R = lambda i: set(regs_of(ops[i])) if i < len(ops) else set()
        allr = lambda a: set().union(*[R(i) for i in range(a, len(ops))]) if len(ops) > a else set()
        if op.startswith("v_mfma"):
            self.kind = "mfma"
            self.w = R(0); self.a = R(1); self.b = R(2); self.c = R(3)
            self.r = self.a | self.b | self.c
            self.passes = 8 if "32x32" in op else 4
        elif op.startswith("v_cmp"):
            self.kind = "valu"; self.w = R(0) if regs_of(ops[0]) else {("s", "vcc")}; self.r = allr(1)
            if op.startswith("v_cmpx"): self.w |= {("s", "exec")}
        elif op.startswith("v_readfirstlane") or op.startswith("v_readlane"):
            self.kind = "valu"; self.w = R(0); self.r = allr(1); self.lane_read = True
        elif op.startswith("v_permlane32_swap") or op.startswith("v_permlane16_swap"):
            self.kind = "valu"; self.w = R(0) | R(1); self.r = R(0) | R(1); self.perm = True
        elif op.startswith("v_"):
            self.kind = "valu"
            self.w = R(0); self.r = allr(1)
            if op.startswith(("v_fmac", "v_dot2c", "v_writelane")): self.r |= R(0)
            if op.startswith(("v_add_co", "v_addc_co", "v_sub_co")):
                self.w |= R(1)
            if op.startswith("v_cndmask") and len(ops) == 3: self.r.add(("s", "vcc"))
            self.trans = op.replace("_e32", "").replace("_e64", "") in TRANS
            self.dot = op.startswith("v_dot")
        elif op.startswith("ds_read") or op.startswith("ds_bpermute"):
            self.kind = "ds"; self.w = R(0); self.r = allr(1)
        elif op.startswith("ds_"):
            self.kind = "ds"; self.r = allr(0)
        elif op.startswith(("global_load_lds", )):
            self.kind = "vmem"; self.r = allr(0) | {("s", "m0")}; self.lds_dma = True
        elif op.startswith(("buffer_load", "global_load")):
            self.kind = "vmem"
            if re.search(r"\blds\b", t):
                self.r = allr(0) | {("s", "m0")}; self.lds_dma = True
            else:
                self.w = R(0); self.r = allr(1)
        elif op.startswith(("buffer_store", "global_store", "buffer_atomic", "global_atomic")):
            self.kind = "vmem"; self.r = allr(0)
            self.store = True
            if op.startswith("global_store") or op.startswith("global_atomic"):
                self.data = R(1)
            else:
                self.data = R(0)
            self.wide = ("x4" in op or "x3" in op)
        elif op.startswith(("buffer_inv", "buffer_wbl2")):
            self.kind = "vmem"
        elif op == "s_nop":
            self.kind = "salu"; self.states = int(ops[0], 0) + 1
        elif op.startswith(("s_waitcnt", "s_barrier", "s_branch", "s_cbranch", "s_endpgm", "s_setprio", "s_sleep")):
            self.kind = "salu"
        elif op.startswith("s_cmp") or op.startswith("s_bitcmp"):
            self.kind = "salu"; self.r = allr(0)
        elif op.startswith("s_load") or op.startswith("s_memtime") or op.startswith("s_memrealtime") or op.startswith("s_getreg"):
            self.kind = "salu"; self.w = R(0); self.r = allr(1)
        elif op.startswith("s_"):
            self.kind = "salu"; self.w = R(0); self.r = allr(1)
            if "saveexec" in op: self.w |= {("s", "exec")}
        else:
            raise ValueError("unknown op " + text)
    @staticmethod
    def _split(s):
        out, depth, cur = [], 0, ""
        for ch in s:
            if ch == "[": depth += 1
            if ch == "]": depth -= 1
            if ch == "," and depth == 0:
                out.append(cur); cur = ""
            else:
                cur += ch
        out.append(cur)
        return out

def check_linear(instrs, name="", window=24):
    bad = []
    n = len(instrs)
    for i, p in enumerate(instrs):
        dist = 0
        for j in range(i + 1, min(n, i + 1 + window)):
            c = instrs[j]
            need = 0; why = ""
            vg = lambda s: {x for x in s if x[0] in "va"}
            sg = lambda s: {x for x in s if x[0] == "s"}
            if p.kind == "valu":
                if c.kind == "mfma" and vg(p.w) & c.r: need, why = 2, "valu->mfma"
                if c.kind == "mfma" and ("s", "exec") in p.w: need, why = 4, "exec->mfma"
                if c.kind == "valu" and getattr(c, "lane_read", False) and vg(p.w) & c.r: need, why = max(need, 1), "valu->readlane"
                if c.kind == "valu" and getattr(c, "perm", False) and vg(p.w) & c.r: need, why = max(need, 2), "valu->permlane"
                if getattr(p, "trans", False) and c.kind == "valu" and not getattr(c, "trans", False) and vg(p.w) & c.r:
                    need, why = max(need, 1), "trans->valu"
                if getattr(p, "dot", False) and c.kind in ("valu", "mfma", "vmem", "ds") and vg(p.w) & (c.r | c.w):
                    if not (getattr(c, "dot", False) and c.op == p.op and vg(p.w) & c.w and p.op.startswith("v_dot2c")):
                        need, why = max(need, 3), "dot->use"
                if c.kind == "vmem" and sg(p.w) & c.r: need, why = max(need, 5), "valu sgpr->vmem"
                if c.kind == "valu" and sg(p.w) & c.r: need, why = max(need, 2), "valu sgpr->valu"
                if c.kind == "salu" and sg(p.w) & c.r and ("s", "exec") not in p.w: need, why = max(need, 1), "valu sgpr->salu(pad)"
                if "dpp" in c.text or "row_" in c.text or "quad_perm" in c.text:
                    if c.kind == "valu" and vg(p.w) & c.r: need, why = max(need, 2), "valu->dpp"
            if p.kind == "mfma":
                big = {8: 12, 4: 8}[p.passes]; ovl = {8: 10, 4: 6}[p.passes]; war = {8: 7, 4: 3}[p.passes]
                if c.kind == "mfma":
                    if p.w & (c.a | c.b): need, why = big, "mfma D->A/B"
                    if p.w & c.c and not (p.w == c.c and p.passes == c.passes): need, why = max(need, ovl), "mfma D->C overlap"
                    if p.w & c.w and not (p.w == c.w) : need, why = max(need, ovl), "mfma D WAW overlap"
                elif c.kind in ("valu", "vmem", "ds"):
                    if p.w & (c.r | c.w): need, why = big, "mfma D->valu/mem"
                    if c.kind == "valu" and p.c & c.w: need, why = max(need, war), "mfma C WAR"
            if p.kind == "vmem" and getattr(p, "store", False) and p.wide:
                if c.kind == "valu" and p.data & c.w: need, why = 2, "store data WAR"
                elif c.kind in ("ds", "vmem", "mfma") and p.data & c.w: need, why = 1, "store data WAR"
            if p.kind == "salu" and ("s", "m0") in p.w and getattr(c, "lds_dma", False): need, why = 1, "m0->dma"
            if need > dist:
                bad.append(f"{name}: [{why}] need {need} have {dist}: '{p.text.strip()}' -> '{c.text.strip()}'")
            dist += c.states
            if dist >= 20: break
    return bad

def check_text(text):
    lines = [l for l in text.split("\n")]
    ins = []; labels = {}; kernels = []
    for l in lines:
        t = l.split(";")[0].strip()
        if not t: continue
        if t.endswith(":"):
            labels[t[:-1]] = len(ins); continue
        if t.startswith("."): continue
        ins.append(Ins(t))
    bad = check_linear(ins, "linear")
    for i, x in enumerate(ins):
        if x.op.startswith(("s_cbranch", "s_branch")):
            tgt = labels.get(x.ops[0])
            if tgt is None: continue
            seq = ins[max(0, i - 30): i + 1] + ins[tgt: tgt + 30]
            bad += check_linear(seq, f"branch@{x.ops[0]}")
    return sorted(set(bad))
```

```python
from asmlib import *

S, D, H, F = 2048, 448, 16, 1792
WS_QF = 0x000000
WS_KV = 0x200000
WS_OF = 0x600000
WS_HF = 0x800000
LOG2E = 1.4426950408889634
QSCALE = (28.0 ** -0.5) * LOG2E

def f32bits(x):
    import struct
    return struct.unpack("<I", struct.pack("<f", x))[0]

def resolve(items):
    out = []; vq = []; lq = []
    for it in items:
        if isinstance(it, str):
            out.append(it)
        elif it[0] == "vm":
            vq.append(it[2]); out.append(it[1])
        elif it[0] == "lg":
            lq.append(it[2]); out.append(it[1])
        elif it[0] == "waitvm":
            idx = [i for i, t in enumerate(vq) if t == it[1]]
            assert idx, f"vm tag {it[1]} not issued"
            n = len(vq) - 1 - idx[-1]
            assert n <= 63, (it, n)
            out.append(f"s_waitcnt vmcnt({n})")
        elif it[0] == "waitlg":
            idx = [i for i, t in enumerate(lq) if t == it[1]]
            assert idx, f"lg tag {it[1]} not issued"
            n = len(lq) - 1 - idx[-1]
            assert n <= 15, (it, n)
            out.append(f"s_waitcnt lgkmcnt({n})")
        else:
            raise ValueError(it)
    return out

def kernel_header(name):
    return f""".globl {name}
.p2align 8
.type {name},@function
{name}:
"""

def kernel_desc(name, nvgpr_total, accum_offset, nsgpr):
    return f""".section .rodata,"a"
.p2align 6
.amdhsa_kernel {name}
  .amdhsa_next_free_vgpr {nvgpr_total}
  .amdhsa_next_free_sgpr {nsgpr}
  .amdhsa_accum_offset {accum_offset}
  .amdhsa_group_segment_fixed_size 0
  .amdhsa_kernarg_size 80
  .amdhsa_user_sgpr_count 2
  .amdhsa_user_sgpr_kernarg_segment_ptr 1
  .amdhsa_system_sgpr_workgroup_id_x 1
.end_amdhsa_kernel
.text
"""

S_X, S_WQKV, S_WO, S_BX, S_W1, S_W3, S_W2, S_OUT, S_DBG, S_WS = 16, 18, 20, 22, 24, 26, 28, 30, 32, 34

def load_kernargs(a):
    a("s_load_dwordx16 s[16:31], s[0:1], 0")
    a("s_load_dwordx4 s[32:35], s[0:1], 64")

def make_srd(a, d, base, nbytes):
    a(f"s_mov_b32 s{d}, s{base}")
    a(f"s_and_b32 s{d+1}, s{base+1}, 0xffff")
    a(f"s_mov_b32 s{d+2}, {nbytes}")
    a(f"s_mov_b32 s{d+3}, 0x20000")
```

```python
from common import *

SLOT = 28672
V_L = 1
V_X0, V_X1 = 2, 3
V_XR = 4
V_WU, V_WF = 8, 9
V_AU, V_AF = 10, 12
V_C1, V_KK = 14, 15
XN = 16
ACCV = 128
V_CUR = 192
V_QS, V_PAD, V_STQK0, V_STQK1, V_STH, V_STV, V_TA = 196, 197, 198, 199, 200, 201, 202
V_RS = 204
T0 = 220
A_RING = 0; A_U0 = 32; A_U1 = 64; A_P = 96
S_W, S_I, S_J = 36, 37, 38
SRD_X, SRD_WQ, SRD_WF = 40, 44, 48
S_M0W, S_OFF = 52, 55
S_HI, S_PADM = 56, 58
S_SELLO, S_SELHI = 60, 61
S_BQK, S_BV0, S_BV1, S_BP0, S_BP1 = 62, 63, 64, 65, 66
S_T = 67

def prologue(a, st_flags):
    a("s_cmp_ge_u32 s2, 256")
    a("s_cbranch_scc1 proj_exit")
    load_kernargs(a)
    a(f"v_and_b32 v{V_L}, 63, v0")
    a("v_lshrrev_b32 v220, 6, v0")
    a("s_and_b32 s3, s2, 7")
    a(f"v_readfirstlane_b32 s{S_W}, v220")
    a("s_lshr_b32 s4, s2, 3")
    a("s_and_b32 s5, s3, 1")
    a("s_lshl_b32 s5, s5, 3")
    a("s_and_b32 s6, s4, 7")
    a(f"s_add_u32 s{S_I}, s5, s6")
    a("s_lshr_b32 s5, s3, 1")
    a("s_lshl_b32 s5, s5, 2")
    a("s_lshr_b32 s6, s4, 3")
    a(f"s_add_u32 s{S_J}, s5, s6")
    a(f"v_lshrrev_b32 v220, 3, v{V_L}")
    a(f"v_and_b32 v221, 7, v{V_L}")
    a(f"v_lshrrev_b32 v222, 4, v{V_L}")
    a("v_mul_u32_u24 v223, 896, v220")
    a("v_xor_b32 v224, v221, v222")
    a(f"v_lshl_add_u32 v{V_X0}, v224, 4, v223")
    a("v_xor_b32 v224, 4, v224")
    a(f"v_lshl_add_u32 v{V_X1}, v224, 4, v223")
    a("v_and_b32 v224, 1, v222")
    a("v_lshlrev_b32 v224, 2, v224")
    a("v_xor_b32 v224, v221, v224")
    a("v_mul_u32_u24 v225, 3584, v220")
    a(f"v_lshl_add_u32 v{V_WF}, v224, 4, v225")
    a("v_min_u32 v224, 6, v224")
    a("v_mul_u32_u24 v225, 2688, v220")
    a(f"v_lshl_add_u32 v{V_WU}, v224, 4, v225")
    a("s_waitcnt lgkmcnt(0)")
    make_srd(a, SRD_X, S_X, S * D * 2)
    make_srd(a, SRD_WQ, S_WQKV, D * 3 * D * 2)
    a(f"s_lshl_b32 s{S_T}, s{S_I}, 2")
    a(f"s_add_u32 s{S_T}, s{S_T}, s{S_W}")
    a(f"s_mul_i32 s4, s{S_T}, {32*896}")
    a(f"s_add_u32 s5, s{S_W}, 1")
    a(f"s_mul_i32 s5, s5, {SLOT}")
    items = []
    for cg in range(7):
        for g in range(4):
            items.append(f"s_add_u32 m0, s5, {(cg*4+g)*1024}")
            items.append(f"s_add_u32 s{S_OFF}, s4, {g*8*896 + cg*128}")
            items.append(("vm", f"buffer_load_dwordx4 v{V_X0 + (g & 1)}, s[{SRD_X}:{SRD_X+3}], s{S_OFF} offen lds", ("x", cg)))
    items += [
        f"s_mul_i32 s{S_M0W}, s{S_W}, 7168",
        f"s_mul_i32 s53, s{S_W}, {56*2688}",
        f"s_and_b32 s54, s{S_W}, 1",
        f"s_mul_i32 s54, s54, {56*3584}",
        f"s_lshr_b32 s6, s{S_J}, 3",
        f"s_mul_i32 s6, s6, 896",
        f"s_and_b32 s7, s{S_J}, 7",
        f"s_mul_i32 s7, s7, 112",
        f"s_add_u32 s{S_BQK}, s53, s6",
        f"s_add_u32 s{S_BQK}, s{S_BQK}, s7",
    ]
    items += dma_items(0, "QK")
    items += [
        f"s_sub_u32 s6, s{S_J}, 12",
        f"s_mul_i32 s7, s6, 224",
        f"s_add_u32 s{S_BV0}, s53, s7",
        f"s_add_u32 s{S_BV0}, s{S_BV0}, 1792",
        f"s_add_u32 s{S_BV1}, s{S_BV0}, 112",
        f"s_lshl_b32 s6, s{S_J}, 1",
        f"s_add_u32 s7, s6, 1",
        f"s_add_u32 s8, s{S_J}, 12",
        f"s_cmp_ge_u32 s{S_J}, 12",
        f"s_cselect_b32 s7, s8, s7",
        f"s_lshl_b32 s8, s6, 7",
        f"s_add_u32 s{S_BP0}, s54, s8",
        f"s_lshl_b32 s8, s7, 7",
        f"s_add_u32 s{S_BP1}, s54, s8",
        f"s_mov_b32 s68, s6",
        f"s_mov_b32 s69, s7",
        f"s_cmp_ge_u32 s{S_W}, 2",
        f"s_cselect_b32 s{SRD_WF}, s{S_W3}, s{S_W1}",
        f"s_cselect_b32 s{SRD_WF+1}, s{S_W3+1}, s{S_W1+1}",
        f"s_and_b32 s{SRD_WF+1}, s{SRD_WF+1}, 0xffff",
        f"s_mov_b32 s{SRD_WF+2}, {D*F*2}",
        f"s_mov_b32 s{SRD_WF+3}, 0x20000",
        f"s_mov_b32 s{S_HI}, 0",
        f"s_mov_b32 s{S_HI+1}, -1",
        f"s_mov_b32 s{S_PADM}, 0xf0000000",
        f"s_mov_b32 s{S_PADM+1}, 0xf0000000",
        f"s_mov_b32 s{S_SELLO}, 0x3f80",
        f"s_mov_b32 s{S_SELHI}, 0x3f800000",
    ]
    items += [
        f"v_and_b32 v220, 31, v{V_L}",
        f"v_lshrrev_b32 v221, 5, v{V_L}",
        "v_lshrrev_b32 v222, 3, v220",
        "v_and_b32 v223, 7, v220",
        "v_lshlrev_b32 v222, 10, v222",
        "v_lshl_add_u32 v222, v223, 7, v222",
        "v_add_u32 v222, s5, v222",
        "v_bfe_u32 v223, v220, 1, 3",
        "v_xor_b32 v223, v223, v221",
    ]
    for s3 in range(4):
        items += [f"v_xor_b32 v224, {2*s3}, v223", f"v_lshl_add_u32 v{V_XR+s3}, v224, 4, v222"]
    items += [
        f"v_bfe_u32 v222, v{V_L}, 2, 2",
        "v_lshl_add_u32 v223, v221, 3, v222",
        "v_lshlrev_b32 v223, 7, v223",
        f"v_bfe_u32 v224, v{V_L}, 4, 1",
        f"v_and_b32 v225, 3, v{V_L}",
        "v_lshlrev_b32 v224, 5, v224",
        "v_lshl_add_u32 v224, v225, 3, v224",
        "v_lshrrev_b32 v225, 1, v222",
        "v_lshlrev_b32 v225, 6, v225",
    ]
    for t in range(2):
        items += [f"v_add_u32 v226, {56*t}, v224", "v_xor_b32 v226, v226, v225", f"v_add_u32 v{V_AU+t}, v226, v223",
                  f"v_add_u32 v226, {64*t}, v224", "v_xor_b32 v226, v226, v225", f"v_add_u32 v{V_AF+t}, v226, v223"]
    items += [
        f"v_lshlrev_b32 v227, 4, v{V_L}",
        f"s_and_b32 s6, s{S_J}, 7",
        f"s_lshl_b32 s6, s6, 7",
        f"s_add_u32 s6, s6, s{S_T}",
        f"s_lshl_b32 s7, s6, 11",
        f"s_lshl_b32 s8, s6, 12",
        f"s_add_u32 s7, s7, {WS_QF}",
        f"s_add_u32 s8, s8, {WS_KV}",
        f"s_cmp_ge_u32 s{S_J}, 8",
        f"s_cselect_b32 s7, s8, s7",
        f"s_mov_b32 s8, 131072",
        f"s_cselect_b32 s8, 262144, s8",
        f"v_add_u32 v{V_STQK0}, s7, v227",
        f"v_add_u32 v{V_STQK1}, s8, v{V_STQK0}",
        f"s_sub_u32 s6, s{S_J}, 12",
        f"s_lshl_b32 s6, s6, 8",
        f"s_add_u32 s6, s6, s{S_T}",
        f"s_lshl_b32 s6, s6, 12",
        f"s_add_u32 s6, s6, {WS_KV + 2048}",
        f"v_add_u32 v{V_STV}, s6, v227",
        f"s_mul_i32 s6, s{S_T}, 114688",
        f"s_add_u32 s6, s6, {WS_HF}",
        f"v_add_u32 v{V_STH}, s6, v227",
        f"v_cmp_eq_u32 vcc, 28, v220",
        f"v_mov_b32 v228, 0x3f803f80",
        "s_nop 0",
        f"v_cndmask_b32 v{V_PAD}, 0, v228, vcc",
    ]
    S0 = 228
    items += [f"v_mov_b32 v{S0+k}, 0" for k in range(4)]
    def dots(cg):
        return [f"v_dot2c_f32_bf16 v{S0 + (i & 3)}, 0x3f803f80, v{XN + 16*cg + i}" for i in range(16)]
    for cg in range(7):
        items.append(("waitvm", ("x", cg)))
        for s3 in range(4):
            s = 4*cg + s3
            items.append(("lg", f"ds_read_b128 v[{XN+4*s}:{XN+4*s+3}], v{V_XR+s3} offset:{cg*4096}", ("xr", cg)))
        if cg >= 1:
            items.append(("waitlg", ("xr", cg-1)))
            items += dots(cg-1)
    items.append(("waitlg", ("xr", 6)))
    items += dots(6)
    items += ["s_nop 2",
              f"v_add_f32 v{S0}, v{S0}, v{S0+1}", f"v_add_f32 v{S0+2}, v{S0+2}, v{S0+3}",
              f"v_add_f32 v{S0}, v{S0}, v{S0+2}", f"v_mov_b32 v{S0+1}, v{S0}", "s_nop 1",
              f"v_permlane32_swap_b32 v{S0}, v{S0+1}", "s_nop 0",
              f"v_add_f32 v{S0}, v{S0}, v{S0+1}",
              f"v_mul_f32 v{S0}, {hex(f32bits(-1.0/D))}, v{S0}"]
    items += [("waitvm", ("w", 0)), "s_barrier"]
    return items, S0

def dma_items(stage, seg):
    slot = (stage % 5) * SLOT
    out = []
    kind, part = STAGES[stage] if seg is None else (seg, 0)
    return [x for it in dma_list(stage, kind, part) for x in it]

STAGES = None
def dma_list(stage, kind, part):
    slot = (stage % 5) * SLOT
    out = []
    for q in range(7):
        if kind in ("QK", "V0", "V1"):
            base = {"QK": S_BQK, "V0": S_BV0, "V1": S_BV1}[kind]
            off = (224*part + 8*q) * 2688
            ld = f"buffer_load_dwordx4 v{V_WU}, s[{SRD_WQ}:{SRD_WQ+3}], s{S_OFF} offen lds"
        else:
            base = {"P0": S_BP0, "P1": S_BP1}[kind]
            off = (112*part + 8*q) * 3584
            ld = f"buffer_load_dwordx4 v{V_WF}, s[{SRD_WF}:{SRD_WF+3}], s{S_OFF} offen lds"
        out.append([f"s_add_u32 m0, s{S_M0W}, {slot + q*1024}", f"s_add_u32 s{S_OFF}, s{base}, {off}", ("vm", ld, ("w", stage))])
    return out

def ln_center(S0):
    it = []
    A0 = 232
    for b in range(28):
        for k in range(4):
            r = XN + 4*b + k
            it.append(f"v_dot2_f32_bf16 v{A0+2*k}, v{r}, s{S_SELLO}, v{S0}")
            it.append(f"v_dot2_f32_bf16 v{A0+2*k+1}, v{r}, s{S_SELHI}, v{S0}")
        for k in range(4):
            it.append(f"v_cvt_pk_bf16_f32 v{XN+4*b+k}, v{A0+2*k}, v{A0+2*k+1}")
    Q0 = 240
    it += [f"v_mov_b32 v{Q0+k}, 0" for k in range(4)]
    for i in range(112):
        it.append(f"v_dot2c_f32_bf16 v{Q0 + (i & 3)}, v{XN+i}, v{XN+i}")
    it += ["s_nop 2",
           f"v_add_f32 v{Q0}, v{Q0}, v{Q0+1}", f"v_add_f32 v{Q0+2}, v{Q0+2}, v{Q0+3}",
           f"v_add_f32 v{Q0}, v{Q0}, v{Q0+2}", f"v_mov_b32 v{Q0+1}, v{Q0}", "s_nop 1",
           f"v_permlane32_swap_b32 v{Q0}, v{Q0+1}", "s_nop 0",
           f"v_add_f32 v{Q0}, v{Q0}, v{Q0+1}",
           f"v_mov_b32 v{Q0+1}, {hex(f32bits(1e-5))}",
           f"v_fmac_f32 v{Q0+1}, {hex(f32bits(1.0/D))}, v{Q0}",
           f"v_mov_b32 v{V_KK}, v{Q0+1}",
           f"v_rsq_f32 v{Q0}, v{Q0+1}", "s_nop 0",
           f"v_mul_f32 v{V_C1}, {hex(f32bits(-LOG2E))}, v{Q0}",
           f"v_mul_f32 v{Q0+1}, {hex(f32bits(QSCALE))}, v{Q0}",
           f"s_cmp_lt_u32 s{S_J}, 8",
           f"s_cselect_b64 s[4:5], -1, 0",
           "s_nop 1",
           f"v_cndmask_b32 v{V_QS}, v{Q0}, v{Q0+1}, s[4:5]"]
    return it, Q0

def v_rstd_table(Q0):
    base = 5 * SLOT
    return [f"v_and_b32 v244, 31, v{V_L}", f"v_lshlrev_b32 v244, 2, v244",
            f"s_lshl_b32 s4, s{S_W}, 7", f"s_add_u32 s4, s4, {base}",
            f"v_add_u32 v244, s4, v244",
            ("lg", f"ds_write_b32 v244, v{Q0}", "rsw"), ("waitlg", "rsw"),
            f"v_lshrrev_b32 v245, 5, v{V_L}", f"v_lshlrev_b32 v245, 4, v245", f"v_add_u32 v245, s4, v245",
            ] + [("lg", f"ds_read_b128 v[{V_RS+4*q}:{V_RS+4*q+3}], v245 offset:{32*q}", "rsr") for q in range(4)] + [("waitlg", "rsr")]

def st(addr, data, off, flags, tag):
    return ("vm", f"global_store_dwordx4 v{addr}, v[{data}:{data+3}], s[{S_WS}:{S_WS+1}] offset:{off} {flags}".rstrip(), tag)

def epi_qk(acc, flags):
    it = []
    for t in range(2):
        pk = T0 + 8*t
        for g in range(4):
            tmp = T0 + 16 + 4*(g & 1)
            it += [f"v_accvgpr_read_b32 v{tmp+k}, a{acc+16*t+4*g+k}" for k in range(4)]
            it += [f"v_mul_f32 v{tmp+k}, v{V_QS}, v{tmp+k}" for k in range(4)]
            it += [f"v_cvt_pk_bf16_f32 v{pk+2*g}, v{tmp}, v{tmp+1}", f"v_cvt_pk_bf16_f32 v{pk+2*g+1}, v{tmp+2}, v{tmp+3}"]
            if g == 1:
                it.append(st(V_STQK0 + t, pk, 0, flags, "st"))
        it += [f"v_cndmask_b32 v{pk+6}, v{pk+6}, 0, s[{S_HI}:{S_HI+1}]", f"v_cndmask_b32 v{pk+7}, v{pk+7}, 0, s[{S_HI}:{S_HI+1}]"]
        it.append(st(V_STQK0 + t, pk+4, 1024, flags, "st"))
    return it

def epi_v(acc, unit, flags):
    it = []
    for t in range(2):
        pk = T0 + 8*t
        it.append(f"v_add_u32 v{V_TA}, {(2*unit+t)*262144}, v{V_STV}")
        for g in range(4):
            tmp = T0 + 16 + 4*(g & 1)
            it += [f"v_accvgpr_read_b32 v{tmp+k}, a{acc+16*t+4*g+k}" for k in range(4)]
            it += [f"v_mul_f32 v{tmp+k}, v{V_RS+4*g+k}, v{tmp+k}" for k in range(4)]
            it += [f"v_cvt_pk_bf16_f32 v{pk+2*g}, v{tmp}, v{tmp+1}", f"v_cvt_pk_bf16_f32 v{pk+2*g+1}, v{tmp+2}, v{tmp+3}"]
            it += [f"v_cndmask_b32 v{pk+2*g}, v{pk+2*g}, v{V_PAD}, s[{S_PADM}:{S_PADM+1}]",
                   f"v_cndmask_b32 v{pk+2*g+1}, v{pk+2*g+1}, v{V_PAD}, s[{S_PADM}:{S_PADM+1}]"]
            if g & 1:
                it.append(st(V_TA, pk + 4*(g >> 1), 1024*(g >> 1), flags, "st"))
    return it

def epi_pair(accbase, in_agpr, s_pair, flags):
    it = [f"s_lshl_b32 s4, s{s_pair}, 12", f"v_add_u32 v{V_TA}, s4, v{V_STH}"]
    groups = [(t, g) for t in range(2) for g in range(4)]
    def stage1(n):
        t, g = groups[n]
        b = T0 + 8 + 12*(n & 1)
        tg, ta, tp = b, b+4, b+8
        o = []
        if in_agpr:
            o += [f"v_accvgpr_read_b32 v{tg+k}, a{accbase+16*t+4*g+k}" for k in range(4)]
            o += [f"v_accvgpr_read_b32 v{tp+k}, a{accbase+32+16*t+4*g+k}" for k in range(4)]
            G = lambda k: tg+k; U = lambda k: tp+k
        else:
            G = lambda k: accbase+16*t+4*g+k; U = lambda k: accbase+32+16*t+4*g+k
        o += [f"v_mul_f32 v{ta+k}, v{V_C1}, v{G(k)}" for k in range(4)]
        o += [f"v_exp_f32 v{ta+k}, v{ta+k}" for k in range(4)]
        o += [f"v_mul_f32 v{tp+k}, v{G(k)}, v{U(k)}" for k in range(4)]
        o += [f"v_fma_f32 v{ta+k}, v{ta+k}, v{V_KK}, v{V_KK}" for k in range(4)]
        o += [f"v_rcp_f32 v{ta+k}, v{ta+k}" for k in range(4)]
        return o
    def stage2(n):
        t, g = groups[n]
        b = T0 + 8 + 12*(n & 1)
        ta, tp = b+4, b+8
        pk = T0 + 4*((n >> 1) & 1)
        o = [f"v_mul_f32 v{tp+k}, v{tp+k}, v{ta+k}" for k in range(4)]
        o += [f"v_cvt_pk_bf16_f32 v{pk+2*(g&1)}, v{tp}, v{tp+1}", f"v_cvt_pk_bf16_f32 v{pk+2*(g&1)+1}, v{tp+2}, v{tp+3}"]
        if g & 1:
            o.append(st(V_TA, pk, (2*t + (g >> 1))*1024, flags, "st"))
        return o
    it += stage1(0)
    for n in range(8):
        if n + 1 < 8:
            s1 = stage1(n+1)
            h = len(s1)//2
            it += s1[:h] + stage2(n) + s1[h:]
        else:
            it += ["s_nop 0"] + stage2(n)
    return it

def weight(it):
    t = it if isinstance(it, str) else it[1]
    if t.startswith(("v_exp", "v_rcp")): return 2
    if t.startswith(("global_store", "buffer_load")): return 3
    if t.startswith("s_"): return 0.5
    return 1

def main_loop(segs, flags, budget=3.0):
    global STAGES
    stages = []
    for kind, acc, ag in segs:
        nparts = 2 if kind in ("QK", "V0", "V1") else 4
        stages += [(kind, p, acc, ag) for p in range(nparts)]
    assert len(stages) == 10
    mf = []
    for sg, (kind, part, acc, ag) in enumerate(stages):
        R = (lambda i, n: ar(i, n)) if ag else (lambda i, n: vr(i, n))
        if kind in ("QK", "V0", "V1"):
            seq = [(s, t, t, 2048*s) for s in range(14) for t in range(2)]
            ks = lambda s: 14*part + s
        else:
            seq = [(s, 2*m + t, t, 2048*s + 14336*m) for s in range(7) for m in range(2) for t in range(2)]
            ks = lambda s: 7*part + s
        for (s, ai, t, off) in seq:
            n = len(mf)
            ring = A_RING + 4*(n % 8)
            accr = R(acc + 16*ai, 16)
            c = "0" if ks(s) == 0 else accr
            xb = vr(XN + 4*ks(s), 4)
            if kind in ("V0", "V1"):
                txt = f"v_mfma_f32_32x32x16_bf16 {accr}, {xb}, {ar(ring,4)}, {c}"
            else:
                txt = f"v_mfma_f32_32x32x16_bf16 {accr}, {ar(ring,4)}, {xb}, {c}"
            cur = V_CUR + 2*(sg & 1) + t
            rd = [("lg", f"ds_read_b64_tr_b16 {ar(ring,2)}, v{cur} offset:{off}", ("fr", n)),
                  ("lg", f"ds_read_b64_tr_b16 {ar(ring+2,2)}, v{cur} offset:{off+512}", ("fr", n))]
            mf.append(dict(txt=txt, rd=rd, stage=sg))
    def set_cur(sg):
        kind = stages[sg][0]
        b = V_AU if kind in ("QK", "V0", "V1") else V_AF
        slot = (sg % 5) * SLOT
        return [f"v_add_u32 v{V_CUR + 2*(sg & 1) + t}, {slot}, v{b+t}" for t in range(2)]
    def epilogue(si):
        kind, acc, ag = segs[si]
        if kind == "QK": return epi_qk(acc, flags)
        if kind == "V0": return epi_v(acc, 0, flags)
        if kind == "V1": return epi_v(acc, 1, flags)
        return epi_pair(acc, ag, 68 if kind == "P0" else 69, flags)
    seg_last = {}
    n0 = 0
    for si, (kind, acc, ag) in enumerate(segs):
        n0 += 56 if kind in ("QK", "V0", "V1") else 112
        seg_last[n0 - 1] = si
    pre = []
    for sg in (1, 2, 3):
        for x in dma_list(sg, stages[sg][0], stages[sg][1]): pre += x
    head = set_cur(0) + ["s_nop 0"]
    for n in range(4): head += mf[n]["rd"]
    out = []
    dq = []; eq = []; eq_ready = 0
    N = len(mf)
    for n in range(N):
        out.append(("waitlg", ("fr", n)))
        out.append(mf[n]["txt"])
        nx = n + 4
        if nx < N:
            if mf[nx]["stage"] != mf[nx-1]["stage"]:
                sg = mf[nx]["stage"]
                out += set_cur(sg)
                out += [("waitvm", ("w", sg)), "s_barrier"]
                if sg + 3 < 10:
                    dq += dma_list(sg + 3, stages[sg+3][0], stages[sg+3][1])
            out += mf[nx]["rd"]
        used = 0.0
        if dq:
            out += dq.pop(0); used += 3.5
        if n in seg_last and n != N - 1:
            assert not eq, "previous epilogue not drained"
            eq = epilogue(seg_last[n]); eq_ready = n + 4
        remaining_gaps = None
        if eq and n >= eq_ready:
            while eq and used + weight(eq[0]) <= budget + 0.01:
                used += weight(eq[0]); out.append(eq.pop(0))
        nxt_last = min([k for k in seg_last if k > n], default=None)
        if eq and nxt_last == n + 1 and nxt_last != N - 1:
            out += eq; eq = []
    tail = eq + ["s_nop 7", "s_nop 3"] + epilogue(len(segs) - 1)
    return pre, head, out, tail

def gen(a, st_flags=""):
    a(kernel_header("proj_kernel"))
    items, S0 = prologue(a, st_flags)
    c_items, Q0 = ln_center(S0)
    segsA = [("QK", A_U0, True), ("P0", A_P, True), ("P1", ACCV, False)]
    segsB = [("QK", A_U0, True), ("V0", A_U1, True), ("V1", A_U0, True), ("P1", ACCV, False)]
    preA, headA, outA, tailA = main_loop(segsA, st_flags)
    preB, headB, outB, tailB = main_loop(segsB, st_flags)
    common = items
    pathA = preA + c_items + headA + outA + tailA
    pathB = preB + c_items + v_rstd_table(Q0) + headB + outB + tailB
    ra = resolve(common + pathA); rb = resolve(common + pathB)
    nc = len(resolve(common))
    assert ra[:nc] == rb[:nc]
    a.ext(ra[:nc])
    a(f"s_cmp_ge_u32 s{S_J}, 12")
    a("s_cbranch_scc1 proj_b")
    a.ext(ra[nc:])
    a("s_endpgm")
    a.label("proj_b")
    a.ext(rb[nc:])
    a.label("proj_exit")
    a("s_endpgm")
    a(kernel_desc("proj_kernel", 416, 256, 96))
```

```python
from common import *

V_L, V_L16, V_L16B = 1, 2, 3
SB = 16
PB = 48
OV = 64
TV = 80
A_Q, A_O, A_KV = 0, 32, 96
S_W, S_HD, S_I = 36, 37, 38
S_KVB = 40
S_KVP = 42
S_NT = 44
S_HI = 46

def mf(d, a_, b, c):
    return f"v_mfma_f32_32x32x16_bf16 {d}, {a_}, {b}, {c}"

def kv_loads(slot, ptr):
    r = A_KV + 16*slot
    return [f"global_load_dwordx4 a[{r+4*z}:{r+4*z+3}], v{V_L16}, s[{ptr}:{ptr+1}] offset:{1024*z}" for z in range(4)]

def next_ptr():
    return [f"s_min_u32 s45, s{S_NT}, 15", "s_lshl_b32 s45, s45, 12",
            f"s_add_u32 s{S_KVP}, s{S_KVB}, s45", f"s_addc_u32 s{S_KVP+1}, s{S_KVB+1}, 0",
            f"s_add_u32 s{S_NT}, s{S_NT}, 1"]

def step(tau, q, extra):
    n = 4*tau + q
    sc = SB + 16*(n % 2); sn = SB + 16*((n+1) % 2)
    pc = PB + 8*(n % 2); pp = PB + 8*((n+1) % 2)
    tn, qn = ((n+1)//4) % 4, (n+1) % 4
    tp, qp = ((n-1)//4) % 4, (n-1) % 4
    kn = A_KV + 16*tn; vp = A_KV + 16*tp + 8
    oacc = ar(A_O + 16*qp, 16)
    m = [mf(vr(sn,16), ar(kn,4), ar(A_Q+8*qn,4), "0"),
         mf(vr(sn,16), ar(kn+4,4), ar(A_Q+8*qn+4,4), vr(sn,16)),
         mf(oacc, ar(vp,4), vr(pp,4), oacc),
         mf(oacc, ar(vp+4,4), vr(pp+4,4), oacc)]
    E = lambda i: [f"v_exp_f32 v{sc+2*i}, v{sc+2*i}", f"v_exp_f32 v{sc+2*i+1}, v{sc+2*i+1}"]
    C = lambda i: [f"v_cvt_pk_bf16_f32 v{pc+i}, v{sc+2*i}, v{sc+2*i+1}"]
    Cprev = [f"v_cvt_pk_bf16_f32 v{pp+7}, v{sn+14}, v{sn+15}"]
    o = E(0) + Cprev + [m[0]] + extra[0] + E(1) + C(0) + E(2) + C(1) + [m[1]] + extra[1]
    o += E(3) + C(2) + E(4) + C(3) + [m[2]] + extra[2] + E(5) + C(4) + E(6) + C(5) + [m[3]] + extra[3] + E(7) + C(6)
    return o

def gen(a, st_flags=""):
    a(kernel_header("attn_kernel"))
    a("s_cmp_ge_u32 s2, 256")
    a("s_cbranch_scc1 attn_exit")
    load_kernargs(a)
    a(f"v_and_b32 v{V_L}, 63, v0")
    a("v_lshrrev_b32 v4, 6, v0")
    a("s_and_b32 s3, s2, 7")
    a(f"v_readfirstlane_b32 s{S_W}, v4")
    a("s_lshr_b32 s4, s2, 3")
    a("s_and_b32 s5, s4, 1")
    a("s_lshl_b32 s3, s3, 1")
    a(f"s_add_u32 s{S_HD}, s3, s5")
    a(f"s_lshr_b32 s{S_I}, s4, 1")
    a(f"v_lshlrev_b32 v{V_L16}, 4, v{V_L}")
    a(f"v_add_u32 v{V_L16B}, 4096, v{V_L16}")
    a(f"s_lshl_b32 s4, s{S_HD}, 6")
    a(f"s_lshl_b32 s5, s{S_W}, 4")
    a("s_add_u32 s5, s5, s4")
    a("s_lshl_b32 s5, s5, 12")
    a(f"s_add_u32 s5, s5, {WS_KV}")
    a(f"s_lshl_b32 s6, s{S_I}, 2")
    a("s_add_u32 s6, s6, s4")
    a("s_lshl_b32 s6, s6, 11")
    a("s_waitcnt lgkmcnt(0)")
    a(f"s_add_u32 s{S_KVB}, s{S_WS}, s5")
    a(f"s_addc_u32 s{S_KVB+1}, s{S_WS+1}, 0")
    a(f"s_add_u32 s8, s{S_WS}, s6")
    a(f"s_addc_u32 s9, s{S_WS+1}, 0")
    a.ext(kv_loads(0, S_KVB))
    for z in range(8):
        vaddr = V_L16 if z < 4 else V_L16B
        a(f"global_load_dwordx4 a[{A_Q+4*z}:{A_Q+4*z+3}], v{vaddr}, s[8:9] offset:{1024*(z & 3)}")
    for t in (1, 2):
        a(f"s_add_u32 s{S_KVP}, s{S_KVB}, {4096*t}")
        a(f"s_addc_u32 s{S_KVP+1}, s{S_KVB+1}, 0")
        a.ext(kv_loads(t, S_KVP))
    a(f"s_mov_b32 s{S_NT}, 3")
    a(f"s_mov_b32 s{S_HI}, 0")
    a(f"s_mov_b32 s{S_HI+1}, -1")
    for r in range(64): a(f"v_accvgpr_write_b32 a{A_O+r}, 0")
    for r in range(8): a(f"v_accvgpr_write_b32 a{A_KV+48+8+r}, 0")
    for r in range(8): a(f"v_mov_b32 v{PB+8+r}, 0")
    a(f"v_mov_b32 v{SB+16+14}, 0")
    a(f"v_mov_b32 v{SB+16+15}, 0")
    a("s_waitcnt vmcnt(8)")
    a(mf(vr(SB,16), ar(A_KV,4), ar(A_Q,4), "0"))
    a(mf(vr(SB,16), ar(A_KV+4,4), ar(A_Q+4,4), vr(SB,16)))
    a("s_mov_b32 s47, 4")
    a.lines.pop()
    a("s_mov_b32 s48, 4")
    a("s_nop 7")
    a("s_nop 3")
    a.label("attn_loop")
    for tau in range(4):
        for q in range(4):
            extra = [[], [], [], []]
            if q == 0:
                p = next_ptr()
                extra[0] = p[:2]; extra[1] = p[2:4]; extra[2] = p[4:]
            if q == 1:
                ld = kv_loads((tau+3) % 4, S_KVP)
                for z in range(4): extra[z] = [ld[z]]
            o = step(tau, q, extra)
            if q == 3:
                k = o.index([x for x in o if x.startswith("v_mfma")][0])
                o.insert(k, "s_waitcnt vmcnt(8)")
            a.ext(o)
    a("s_sub_u32 s48, s48, 1")
    a("s_cmp_lg_u32 s48, 0")
    a("s_cbranch_scc1 attn_loop")
    a(f"v_cvt_pk_bf16_f32 v{PB+8+7}, v{SB+16+14}, v{SB+16+15}")
    a("s_nop 1")
    oacc = ar(A_O + 48, 16)
    a(mf(oacc, ar(A_KV+48+8,4), vr(PB+8,4), oacc))
    a(mf(oacc, ar(A_KV+48+12,4), vr(PB+12,4), oacc))
    a(f"s_lshl_b32 s4, s{S_W}, 12")
    a(f"v_add_u32 v4, s4, v{V_L16}")
    a(f"s_lshl_b32 s4, s{S_W}, 14")
    a(f"v_add_u32 v5, s4, v{V_L16}")
    a("s_nop 7")
    a("s_nop 3")
    for d in range(4):
        for r4 in range(4):
            a(f"ds_write_b128 v4, a[{A_O+16*d+4*r4}:{A_O+16*d+4*r4+3}] offset:{d*16384 + r4*1024}")
    a("s_waitcnt lgkmcnt(0)")
    a("s_barrier")
    R = 96
    items = []
    for src in range(4):
        dst = OV if src == 0 else R + 16*(src-1)
        for r4 in range(4):
            items.append(("lg", f"ds_read_b128 v[{dst+4*r4}:{dst+4*r4+3}], v5 offset:{src*4096 + r4*1024}", ("c", src)))
        if src >= 2:
            pass
    its = items[:8] + [("waitlg", ("c", 1))]
    its += [f"v_add_f32 v{OV+r}, v{OV+r}, v{R+r}" for r in range(16)][:0]
    its += items[8:] + [f"v_add_f32 v{OV+r}, v{OV+r}, v{R+r}" for r in range(16)]
    its += [("waitlg", ("c", 2))] + [f"v_add_f32 v{OV+r}, v{OV+r}, v{R+16+r}" for r in range(16)]
    its += [("waitlg", ("c", 3))] + [f"v_add_f32 v{OV+r}, v{OV+r}, v{R+32+r}" for r in range(16)]
    a.ext(resolve(its))
    a(f"v_mov_b32 v{TV}, v{OV+12}")
    a(f"v_mov_b32 v{TV+1}, v{OV+12}")
    a(f"v_mul_f32 v{TV+2}, 0, v{OV}")
    for r in range(1, 16): a(f"v_fmac_f32 v{TV+2}, 0, v{OV+r}")
    a(f"v_permlane32_swap_b32 v{TV}, v{TV+1}")
    a(f"s_mov_b32 s4, {hex(f32bits(2.0**-80))}")
    a(f"s_mov_b32 s5, {hex(f32bits(2.0**100))}")
    a(f"v_cmp_nle_f32 vcc, s4, v{TV+1}")
    a(f"v_cmp_nge_f32 s[6:7], s5, v{TV+1}")
    a(f"v_cmp_u_f32 s[8:9], v{TV+2}, v{TV+2}")
    a("s_nop 1")
    a("s_or_b64 s[6:7], s[6:7], s[8:9]")
    a("s_or_b64 vcc, vcc, s[6:7]")
    a("s_cbranch_vccnz attn_slow")
    a.label("attn_norm")
    a(f"v_rcp_f32 v{TV+1}, v{TV+1}")
    a(f"s_lshl_b32 s4, s{S_I}, 2")
    a(f"s_add_u32 s4, s4, s{S_W}")
    a("s_lshl_b32 s4, s4, 4")
    a(f"s_add_u32 s4, s4, s{S_HD}")
    a("s_lshl_b32 s4, s4, 11")
    a(f"s_add_u32 s4, s4, {WS_OF}")
    a(f"v_add_u32 v6, s4, v{V_L16}")
    for r in range(16): a(f"v_mul_f32 v{OV+r}, v{OV+r}, v{TV+1}")
    for k in range(8): a(f"v_cvt_pk_bf16_f32 v{TV+4+k}, v{OV+2*k}, v{OV+2*k+1}")
    a(f"v_cndmask_b32 v{TV+10}, v{TV+10}, 0, s[{S_HI}:{S_HI+1}]")
    a(f"v_cndmask_b32 v{TV+11}, v{TV+11}, 0, s[{S_HI}:{S_HI+1}]")
    a(f"global_store_dwordx4 v6, v[{TV+4}:{TV+7}], s[{S_WS}:{S_WS+1}] {st_flags}".rstrip())
    a(f"global_store_dwordx4 v6, v[{TV+8}:{TV+11}], s[{S_WS}:{S_WS+1}] offset:1024 {st_flags}".rstrip())
    a("s_endpgm")
    a.label("attn_slow")
    a(f"s_lshl_b32 s4, s{S_HD}, 6")
    a(f"s_lshl_b32 s5, s{S_I}, 2")
    a(f"s_add_u32 s5, s5, s{S_W}")
    a("s_add_u32 s5, s5, s4")
    a("s_lshl_b32 s5, s5, 11")
    a(f"s_add_u32 s6, s{S_WS}, s5")
    a(f"s_addc_u32 s7, s{S_WS+1}, 0")
    a("s_waitcnt vmcnt(0)")
    a(f"global_load_dwordx4 a[0:3], v{V_L16}, s[6:7]")
    a(f"global_load_dwordx4 a[4:7], v{V_L16}, s[6:7] offset:1024")
    a("s_lshl_b32 s4, s4, 12")
    a(f"s_add_u32 s4, s4, {WS_KV}")
    a(f"s_add_u32 s{S_KVP}, s{S_WS}, s4")
    a(f"s_addc_u32 s{S_KVP+1}, s{S_WS+1}, 0")
    M, AL = TV+12, TV+13
    a(f"v_mov_b32 v{M}, 0xff800000")
    for r in range(16): a(f"v_mov_b32 v{OV+r}, 0")
    a("s_mov_b32 s48, 64")
    a.label("attn_slow_loop")
    a.ext(kv_loads(0, S_KVP))
    a(f"s_add_u32 s{S_KVP}, s{S_KVP}, 4096")
    a(f"s_addc_u32 s{S_KVP+1}, s{S_KVP+1}, 0")
    a("s_waitcnt vmcnt(0)")
    a(mf(vr(SB,16), ar(A_KV,4), ar(0,4), "0"))
    a(mf(vr(SB,16), ar(A_KV+4,4), ar(4,4), vr(SB,16)))
    a("s_nop 7")
    a("s_nop 3")
    a(f"v_max3_f32 v{TV}, v{SB}, v{SB+1}, v{SB+2}")
    for r in range(3, 15, 2): a(f"v_max3_f32 v{TV}, v{TV}, v{SB+r}, v{SB+r+1}")
    a(f"v_max3_f32 v{TV}, v{TV}, v{SB+15}, v{M}")
    a(f"v_mov_b32 v{TV+1}, v{TV}")
    a("s_nop 1")
    a(f"v_permlane32_swap_b32 v{TV}, v{TV+1}")
    a("s_nop 0")
    a(f"v_max_f32 v{TV}, v{TV}, v{TV+1}")
    a(f"v_sub_f32 v{AL}, v{M}, v{TV}")
    a(f"v_exp_f32 v{AL}, v{AL}")
    a(f"v_mov_b32 v{M}, v{TV}")
    for r in range(16): a(f"v_sub_f32 v{SB+r}, v{SB+r}, v{M}")
    for r in range(16): a(f"v_exp_f32 v{SB+r}, v{SB+r}")
    for r in range(16): a(f"v_mul_f32 v{OV+r}, v{OV+r}, v{AL}")
    for k in range(8): a(f"v_cvt_pk_bf16_f32 v{PB+k}, v{SB+2*k}, v{SB+2*k+1}")
    a("s_nop 1")
    a(mf(vr(OV,16), ar(A_KV+8,4), vr(PB,4), vr(OV,16)))
    a(mf(vr(OV,16), ar(A_KV+12,4), vr(PB+4,4), vr(OV,16)))
    a("s_sub_u32 s48, s48, 1")
    a("s_cmp_lg_u32 s48, 0")
    a("s_nop 7")
    a("s_nop 3")
    a("s_cbranch_scc1 attn_slow_loop")
    a(f"v_mov_b32 v{TV}, v{OV+12}")
    a(f"v_mov_b32 v{TV+1}, v{OV+12}")
    a("s_nop 1")
    a(f"v_permlane32_swap_b32 v{TV}, v{TV+1}")
    a("s_nop 1")
    a("s_branch attn_norm")
    a.label("attn_exit")
    a("s_endpgm")
    a(kernel_desc("attn_kernel", 416, 256, 64))
```

```python
from common import *

V_L, V_L16, V_WD, V_XA = 1, 2, 3, 4
V_A = 6
XR = 8
OV = 16
RV = 32
TV = 80
A_ACC, A_AF, A_B = 0, 64, 96
S_W, S_RT, S_CT = 36, 37, 38
SRD_WO, SRD_W2 = 40, 44
S_LB, S_OFF = 48, 49
S_OB = 50
S_HB = 54
S_SO, S_S2 = 58, 59

NK = 36
def gen(a, st_flags=""):
    a(kernel_header("final_kernel"))
    a("s_cmp_ge_u32 s2, 224")
    a("s_cbranch_scc1 final_exit")
    load_kernargs(a)
    a(f"v_and_b32 v{V_L}, 63, v0")
    a("v_lshrrev_b32 v20, 6, v0")
    a("s_and_b32 s3, s2, 7")
    a(f"v_readfirstlane_b32 s{S_W}, v20")
    a("s_lshr_b32 s4, s2, 3")
    a("s_and_b32 s5, s4, 3")
    a("s_lshl_b32 s3, s3, 2")
    a(f"s_add_u32 s{S_RT}, s3, s5")
    a(f"s_lshr_b32 s{S_CT}, s4, 2")
    a(f"v_lshlrev_b32 v{V_L16}, 4, v{V_L}")
    a(f"v_lshrrev_b32 v20, 3, v{V_L}")
    a(f"v_and_b32 v21, 7, v{V_L}")
    a(f"v_bfe_u32 v22, v{V_L}, 4, 1")
    a("v_lshlrev_b32 v22, 2, v22")
    a("v_xor_b32 v22, v21, v22")
    a("v_mul_u32_u24 v23, 896, v20")
    a(f"v_lshl_add_u32 v{V_WD}, v22, 4, v23")
    a(f"s_lshl_b32 s{S_LB}, s{S_W}, 15")
    a(f"v_lshrrev_b32 v20, 5, v{V_L}")
    a(f"v_bfe_u32 v21, v{V_L}, 2, 2")
    a("v_lshl_add_u32 v22, v20, 2, v21")
    a("v_lshlrev_b32 v22, 7, v22")
    a(f"v_add_u32 v22, s{S_LB}, v22")
    a(f"v_bfe_u32 v23, v{V_L}, 4, 1")
    a(f"v_and_b32 v24, 3, v{V_L}")
    a("v_lshlrev_b32 v23, 5, v23")
    a("v_lshl_add_u32 v23, v24, 3, v23")
    a("v_lshrrev_b32 v24, 1, v21")
    a("v_lshlrev_b32 v24, 6, v24")
    for t in range(2):
        a(f"v_add_u32 v25, {64*t}, v23")
        a("v_xor_b32 v25, v25, v24")
        a(f"v_add_u32 v{V_A+t}, v25, v22")
    a(f"s_and_b32 s4, s{S_W}, 1")
    a("s_lshl_b32 s4, s4, 5")
    a(f"s_lshl_b32 s5, s{S_RT}, 6")
    a("s_add_u32 s4, s4, s5")
    a("s_mul_i32 s4, s4, 896")
    a(f"s_lshr_b32 s5, s{S_W}, 1")
    a("s_lshl_b32 s5, s5, 6")
    a(f"s_lshl_b32 s6, s{S_CT}, 7")
    a("s_add_u32 s4, s4, s5")
    a("s_add_u32 s4, s4, s6")
    a(f"v_and_b32 v21, 31, v{V_L}")
    a("v_mul_u32_u24 v21, 896, v21")
    a("v_lshl_add_u32 v21, v20, 4, v21")
    a(f"v_add_u32 v{V_XA}, s4, v21")
    a("s_waitcnt lgkmcnt(0)")
    make_srd(a, SRD_WO, S_WO, D*D*2)
    make_srd(a, SRD_W2, S_W2, F*D*2)
    for tt in range(2):
        a(f"s_lshl_b32 s4, s{S_RT}, 1")
        a(f"s_add_u32 s4, s4, {tt}")
        a("s_lshl_b32 s5, s4, 15")
        a(f"s_lshl_b32 s6, s{S_W}, 13")
        a("s_add_u32 s5, s5, s6")
        a(f"s_add_u32 s5, s5, {WS_OF}")
        a(f"s_add_u32 s{S_OB+2*tt}, s{S_WS}, s5")
        a(f"s_addc_u32 s{S_OB+2*tt+1}, s{S_WS+1}, 0")
        a("s_mul_i32 s5, s4, 114688")
        a(f"s_mul_i32 s6, s{S_W}, {28*1024}")
        a("s_add_u32 s5, s5, s6")
        a(f"s_add_u32 s5, s5, {WS_HF}")
        a(f"s_add_u32 s{S_HB+2*tt}, s{S_WS}, s5")
        a(f"s_addc_u32 s{S_HB+2*tt+1}, s{S_WS+1}, 0")
    a(f"s_lshl_b32 s4, s{S_CT}, 7")
    a(f"s_mul_i32 s5, s{S_W}, {112*896}")
    a(f"s_add_u32 s{S_SO}, s4, s5")
    a(f"s_mul_i32 s5, s{S_W}, {448*896}")
    a(f"s_add_u32 s{S_S2}, s4, s5")

    def bload(ks):
        out = []
        slot = A_B + 8*(ks % 8)
        for tt in range(2):
            if ks < 8:
                base, idx = S_OB + 2*tt, ks
            else:
                base, idx = S_HB + 2*tt, ks - 8
            pre = []
            if idx % 4 == 0 and idx > 0:
                pre = [f"s_add_u32 s{base}, s{base}, 4096", f"s_addc_u32 s{base+1}, s{base+1}, 0"]
            out.append(pre + [("vm", f"global_load_dwordx4 a[{slot+4*tt}:{slot+4*tt+3}], v{V_L16}, s[{base}:{base+1}] offset:{1024*(idx % 4)}", ("b", ks))])
        return out
    def dma_wo():
        return [[f"s_add_u32 m0, s{S_LB}, {q*1024}", f"s_add_u32 s{S_OFF}, s{S_SO}, {q*8*896}",
                 ("vm", f"buffer_load_dwordx4 v{V_WD}, s[{SRD_WO}:{SRD_WO+3}], s{S_OFF} offen lds", "wo")] for q in range(15)]
    def dma_w2(g):
        slot = ((2 + g) % 4) * 8192
        return [[f"s_add_u32 m0, s{S_LB}, {slot + q*1024}", f"s_add_u32 s{S_OFF}, s{S_S2}, {(64*g + 8*q)*896}",
                 ("vm", f"buffer_load_dwordx4 v{V_WD}, s[{SRD_W2}:{SRD_W2+3}], s{S_OFF} offen lds", ("w2", g))] for q in range(8)]
    def aread(ks):
        out = []
        for t in range(2):
            r = A_AF + 16*(ks % 2) + 8*0 + 4*t if False else A_AF + 8*(ks % 4) + 4*t
            if ks < 8:
                off = (28*(ks >> 1) + 16*(ks & 1)) * 128
            else:
                g, sl = (ks-8) >> 2, (ks-8) & 3
                off = ((2 + g) % 4) * 8192 + 16*sl*128
            out.append(("lg", f"ds_read_b64_tr_b16 {ar(r,2)}, v{V_A+t} offset:{off}", ("a", ks)))
            out.append(("lg", f"ds_read_b64_tr_b16 {ar(r+2,2)}, v{V_A+t} offset:{off+1024}", ("a", ks)))
        return out
    it = []
    wo = dma_wo()
    for ks in range(8):
        for x in bload(ks): it += x
        for x in wo[2*ks: 2*ks+2]: it += x
    it.append(("vm", f"global_load_dwordx4 v[{XR}:{XR+3}], v{V_XA}, s[{S_X}:{S_X+1}]", "x"))
    it.append(("vm", f"global_load_dwordx4 v[{XR+4}:{XR+7}], v{V_XA}, s[{S_X}:{S_X+1}] offset:32", "x"))
    for g in (0, 1):
        for x in dma_w2(g): it += x
    it.append(("waitvm", "wo"))
    it += aread(0) + aread(1)
    dq = []
    for ks in range(NK):
        it.append(("waitvm", ("b", ks)))
        it.append(("waitlg", ("a", ks)))
        ra = A_AF + 8*(ks % 4); rb = A_B + 8*(ks % 8)
        gaps = [[], [], [], []]
        nx = ks + 2
        if nx < NK:
            rd = aread(nx)
            if nx >= 8 and (nx - 8) % 4 == 0:
                gaps[0].append(("waitvm", ("w2", (nx-8) >> 2)))
            gaps[0] += rd[:2]; gaps[1] += rd[2:]
        if ks == 8: dq += dma_w2(2) + dma_w2(3)
        if ks >= 12 and (ks - 8) % 4 == 0:
            g = (ks - 8)//4 + 3
            if g < 7: dq += dma_w2(g)
        for z in range(4):
            t, tt = z >> 1, z & 1
            acc = ar(A_ACC + 16*(2*t + tt), 16)
            c = "0" if ks == 0 else acc
            it.append(f"v_mfma_f32_32x32x16_bf16 {acc}, {ar(ra+4*t,4)}, {ar(rb+4*tt,4)}, {c}")
            it += gaps[z]
            if z == 3 and ks + 8 < NK:
                for x in bload(ks + 8): it += x
            if z in (1, 2) and dq: it += dq.pop(0)
            if z == 2 and dq: it += dq.pop(0)
    assert not dq
    a.ext(resolve(it))
    a(f"s_lshl_b32 s4, s{S_W}, 12")
    a(f"v_add_u32 v96, s4, v{V_L16}")
    a(f"s_lshl_b32 s4, s{S_W}, 14")
    a(f"v_add_u32 v97, s4, v{V_L16}")
    a("s_nop 7")
    a("s_nop 3")
    a("s_barrier")
    for d in range(4):
        for r4 in range(4):
            a(f"ds_write_b128 v96, a[{A_ACC+16*d+4*r4}:{A_ACC+16*d+4*r4+3}] offset:{d*16384 + r4*1024}")
    a("s_waitcnt lgkmcnt(0)")
    a("s_barrier")
    items = []
    for src in range(4):
        dst = OV if src == 0 else RV + 16*(src-1)
        for r4 in range(4):
            items.append(("lg", f"ds_read_b128 v[{dst+4*r4}:{dst+4*r4+3}], v97 offset:{src*4096 + r4*1024}", ("c", src)))
    its = items[:8] + [f"v_permlane32_swap_b32 v{XR}, v{XR+2}", f"v_permlane32_swap_b32 v{XR+1}, v{XR+3}",
                       f"v_permlane32_swap_b32 v{XR+4}, v{XR+6}", f"v_permlane32_swap_b32 v{XR+5}, v{XR+7}"]
    its += [("waitlg", ("c", 1))] + items[8:]
    its += [f"v_add_f32 v{OV+r}, v{OV+r}, v{RV+r}" for r in range(16)]
    its += [("waitlg", ("c", 2))] + [f"v_add_f32 v{OV+r}, v{OV+r}, v{RV+16+r}" for r in range(16)]
    its += [("waitlg", ("c", 3))] + [f"v_add_f32 v{OV+r}, v{OV+r}, v{RV+32+r}" for r in range(16)]
    for q in range(4):
        xq = [XR + (0, 2, 4, 6)[q], XR + (1, 3, 5, 7)[q]]
        for k in range(2):
            its += [f"v_lshlrev_b32 v{TV}, 16, v{xq[k]}", f"v_and_b32 v{TV+1}, 0xffff0000, v{xq[k]}",
                    f"v_add_f32 v{OV+4*q+2*k}, v{OV+4*q+2*k}, v{TV}", f"v_add_f32 v{OV+4*q+2*k+1}, v{OV+4*q+2*k+1}, v{TV+1}"]
    for k in range(8): its.append(f"v_cvt_pk_bf16_f32 v{TV+4+k}, v{OV+2*k}, v{OV+2*k+1}")
    its += ["s_nop 1", f"v_permlane32_swap_b32 v{TV+4}, v{TV+6}", f"v_permlane32_swap_b32 v{TV+5}, v{TV+7}",
            f"v_permlane32_swap_b32 v{TV+8}, v{TV+10}", f"v_permlane32_swap_b32 v{TV+9}, v{TV+11}",
            f"global_store_dwordx4 v{V_XA}, v[{TV+4}:{TV+7}], s[{S_OUT}:{S_OUT+1}]",
            f"global_store_dwordx4 v{V_XA}, v[{TV+8}:{TV+11}], s[{S_OUT}:{S_OUT+1}] offset:32"]
    a.ext(resolve(its))
    a.label("final_exit")
    a("s_endpgm")
    a(kernel_desc("final_kernel", 416, 256, 64))
```

```python
import sys
sys.path.insert(0, "gen")
from common import *
import k1, k2, k3
NAME = "parallel_sum__softmax_full_mha__glu_gated_swiglu__prompt"
HEAD = """; LayerNorm -> (multi-head attention + SwiGLU FFN) -> residual sum, bf16 in / bf16 out.
"""
def build3():
    a = Asm()
    a(".amdgcn_target \"amdgcn-amd-amdhsa--gfx950\"")
    a(".text")
    k1.gen(a); k2.gen(a); k3.gen(a)
    body = a.text()
    bad = check_text(body)
    assert not bad, "\n".join(bad[:20])
    head = HEAD + "; @launch kernel=proj_kernel grid=(256,1,1) block=(256,1,1) lds=147456\n" \
                + "; @launch kernel=attn_kernel grid=(256,1,1) block=(256,1,1) lds=65536\n" \
                + "; @launch kernel=final_kernel grid=(224,1,1) block=(256,1,1) lds=131072\n"
    return head + body
if __name__ == "__main__":
    out = sys.argv[1] if len(sys.argv) > 1 else f"cdna_kernels/{NAME}.s"
    open(out, "w").write(build3())
    print("wrote", out)
```
